```python
import torch

def _softmax(x, axis=-1):
    return torch.softmax(x, dim=axis)
def _gelu(x):
    return torch.nn.functional.gelu(x, approximate="tanh")
def _silu(x):
    return torch.nn.functional.silu(x)
def _sigmoid(x):
    return torch.sigmoid(x)
def _layernorm(x, axis=-1, eps=1e-5):
    m = x.mean(dim=axis, keepdim=True)
    v = x.var(dim=axis, keepdim=True, unbiased=False)
    return (x - m) / torch.sqrt(v + eps)
def _scatter_add(tgt, idx, src, axis=0):
    return tgt.clone().index_add_(axis, idx, src)
def _segment_sum(src, seg, n):
    out = torch.zeros((n,) + src.shape[1:], dtype=src.dtype)
    return out.index_add_(0, seg, src)
def _pad(x, pw):
    flat = tuple(v for pair in reversed(pw) for v in pair)
    return torch.nn.functional.pad(x, flat)

kernel_name = 'recurrent_scan__sliding_block__mixer_s_mlp__prompt'

def setup_inputs():

    _w = (lambda a: (lambda t: t.to(torch.bfloat16) if t.is_floating_point() else t)(torch.as_tensor(a)))
    def _A_setup():
        B, S, D = 1, 2048, 640
        return {
            "x": _w((lambda *s: torch.randn(*s, dtype=torch.bfloat16) * 0.05)(B, S, D)),
            "wqkv": _w((lambda *s: torch.randn(*s, dtype=torch.bfloat16) * 0.05)(D, 3 * D)),
            "wo": _w((lambda *s: torch.randn(*s, dtype=torch.bfloat16) * 0.05)(D, D)),
        }
    _A_in = _A_setup()

    def _B_setup():
        B, S, D, F = 1, 2048, 640, 1728
        return {
            "x":  _w((lambda *s: torch.randn(*s, dtype=torch.bfloat16) * 0.05)(B, S, D)),
            "w1": _w((lambda *s: torch.randn(*s, dtype=torch.bfloat16) * 0.8)(D, D) * (D ** -0.5)),
            "w2": _w((lambda *s: torch.randn(*s, dtype=torch.bfloat16) * 0.8)(D, D) * (D ** -0.5)),
            "w3": _w((lambda *s: torch.randn(*s, dtype=torch.bfloat16) * 0.8)(D, F) * (D ** -0.5)),
            "w4": _w((lambda *s: torch.randn(*s, dtype=torch.bfloat16) * 0.8)(F, D) * (F ** -0.5)),
        }
    _B_in = _B_setup()

    return {
        "A_x": _A_in["x"],
        "A_wqkv": _A_in["wqkv"],
        "A_wo": _A_in["wo"],
        "B_x": _B_in["x"],
        "B_w1": _B_in["w1"],
        "B_w2": _B_in["w2"],
        "B_w3": _B_in["w3"],
        "B_w4": _B_in["w4"],
    }

def reference(A_x, A_wqkv, A_wo, B_x, B_w1, B_w2, B_w3, B_w4):
    def _A_ref(x, wqkv, wo):
        B, S, D = x.shape
        H = 32; Dh = D // H; W = 256
        qkv = (lambda x, *d: x.permute(*d))((x @ wqkv).reshape(B, S, 3, H, Dh), 2, 0, 3, 1, 4)
        q, k, v = qkv[0], qkv[1], qkv[2]
        scores = torch.einsum("bhqd,bhkd->bhqk", q, k) * (Dh ** -0.5)
        idx = torch.arange(S)
        mask = (idx[:, None] - idx[None, :] >= 0) & (idx[:, None] - idx[None, :] < W)
        scores = torch.where(mask[None, None], scores, -1e9)
        p = _softmax(scores, axis=-1)
        o = torch.einsum("bhqk,bhkd->bhqd", p, v)
        return (lambda x, *d: x.permute(*d))(o, 0, 2, 1, 3).reshape(B, S, D) @ wo

    def _B_ref(x, w1, w2, w3, w4):
        B, S, D = x.shape
        h = _gelu(_layernorm(x, axis=-1) @ w1)
        c = D // 4
        g0 = _pad(h[:, :, 0*c:1*c], ((0, 0), (1, 0), (0, 0)))[:, :S, :]
        g1 = _pad(h[:, :, 1*c:2*c], ((0, 0), (0, 1), (0, 0)))[:, 1:, :]
        g2 = _pad(h[:, :, 2*c:3*c], ((0, 0), (2, 0), (0, 0)))[:, :S, :]
        g3 = _pad(h[:, :, 3*c:   ], ((0, 0), (0, 2), (0, 0)))[:, 2:, :]
        hs = torch.concatenate([g0, g1, g2, g3], axis=-1) @ w2
        x1 = x + hs
        h2 = _gelu(_layernorm(x1, axis=-1) @ w3) @ w4
        return x1 + h2

    x = A_x
    xn = _layernorm(x, axis=-1)
    s = _A_ref(xn, A_wqkv, A_wo)
    g = _silu(_B_ref(xn, B_w1, B_w2, B_w3, B_w4))
    return x + s * g
```

```python
import re

_REG = re.compile(r'\b([vas])\[(\d+):(\d+)\]|\b([vas])(\d+)\b|\b(vcc|exec|m0)\b')
TRANS = ('v_exp_f32', 'v_log_f32', 'v_rcp_f32', 'v_rsq_f32', 'v_sqrt_f32', 'v_sin_f32', 'v_cos_f32')


def regs_of(s):
    out = []
    for m in _REG.finditer(s):
        if m.group(1):
            out += [m.group(1) + str(i) for i in range(int(m.group(2)), int(m.group(3)) + 1)]
        elif m.group(4):
            out.append(m.group(4) + m.group(5))
        else:
            out.append(m.group(6))
    return out


def split_ops(s):
    ops, depth, cur = [], 0, ''
    for ch in s:
        if ch == '[' or ch == '(':
            depth += 1
        if ch == ']' or ch == ')':
            depth -= 1
        if ch == ',' and depth == 0:
            ops.append(cur.strip()); cur = ''
        else:
            cur += ch
    if cur.strip():
        ops.append(cur.strip())
    return ops


class Ins:
    def __init__(self, text, pseudo=None, arg=None):
        self.text = text
        self.pseudo = pseudo
        self.arg = arg
        self.need_vm = None
        self.need_lg = None
        self.need_nop = 0
        self.defs, self.uses = [], []
        self.srcc = []
        self.ab = []
        self.sdata = []
        self.kind = 'pseudo'
        self.cost = 0
        self.passes = 0
        if pseudo is None:
            self.parse()

    def parse(self):
        t = self.text.strip()
        sp = t.split(None, 1)
        op = sp[0]
        self.op = op
        ops = split_ops(sp[1]) if len(sp) > 1 else []
        R = regs_of
        self.cost = 4
        if op.startswith('v_mfma'):
            self.kind = 'mfma'
            self.defs = R(ops[0]); self.ab = R(ops[1]) + R(ops[2]); self.srcc = R(ops[3])
            self.uses = self.ab + self.srcc
            self.passes = 8 if '32x32' in op else (4 if '16x16' in op else 2)
            self.cost = 8
        elif op.startswith('v_'):
            base = re.sub(r'_(e32|e64|dpp|sdwa)$', '', op)
            self.kind = 'valu'
            self.trans = base in TRANS
            if self.trans:
                self.cost = 8
            self.dot = base.startswith('v_dot')
            self.dpp = 'row_' in t or 'quad_perm' in t or 'wave_' in t
            if base.startswith('v_permlane'):
                self.defs = R(ops[0]) + R(ops[1]); self.uses = list(self.defs); self.cost = 8
            elif base in ('v_add_co_u32', 'v_addc_co_u32', 'v_sub_co_u32'):
                self.defs = R(ops[0]) + R(ops[1]); self.uses = sum((R(o) for o in ops[2:]), [])
            else:
                self.defs = R(ops[0]); self.uses = sum((R(o) for o in ops[1:]), [])
                if base in ('v_fmac_f32', 'v_dot2c_f32_bf16', 'v_writelane_b32'):
                    self.uses += self.defs
        elif op.startswith('ds_'):
            if op.startswith('ds_read') or 'permute' in op or 'swizzle' in op:
                self.kind = 'ds_r'
                self.defs = R(ops[0]); self.uses = sum((R(o.split(' offset')[0]) for o in ops[1:]), [])
            else:
                self.kind = 'ds_w'
                self.uses = sum((R(o.split(' offset')[0]) for o in ops), [])
        elif op.startswith('buffer_') or op.startswith('global_'):
            words = t.split()
            if op in ('buffer_inv', 'buffer_wbl2'):
                self.kind = 'vm_st'
            elif 'lds' in words[1:] or '_lds_' in op:
                self.kind = 'vm_dma'
                self.uses = sum((R(o) for o in ops), []) + ['m0']
            elif '_load' in op:
                self.kind = 'vm_ld'
                self.defs = R(ops[0]); self.uses = sum((R(o) for o in ops[1:]), [])
            else:
                self.kind = 'vm_st'
                self.uses = sum((R(o) for o in ops), [])
                if 'x4' in op or 'x3' in op:
                    self.sdata = R(ops[0]) if op.startswith('buffer_') else R(ops[1])
                if 'atomic' in op and 'sc0' in words:
                    self.kind = 'vm_ld'; self.defs = R(ops[0])
        elif op.startswith('s_'):
            self.kind = 'salu'
            if op in ('s_nop',):
                self.kind = 'nop'; self.cost = 4 * (int(ops[0]) + 1)
            elif op in ('s_waitcnt', 's_barrier', 's_sleep', 's_setprio', 's_endpgm', 's_branch') or op.startswith('s_cbranch'):
                if op == 's_barrier':
                    self.kind = 'bar'
                if op.startswith('s_cbranch_vcc'):
                    self.uses = ['vcc']
            elif op.startswith('s_cmp') or op.startswith('s_bitcmp'):
                self.uses = sum((R(o) for o in ops), [])
            elif op.startswith('s_load') or op in ('s_memtime', 's_memrealtime'):
                self.kind = 'smem'
                self.defs = R(ops[0]); self.uses = sum((R(o) for o in ops[1:]), [])
            else:
                self.defs = R(ops[0]); self.uses = sum((R(o) for o in ops[1:]), [])
                if 'saveexec' in op:
                    self.defs = self.defs + ['exec']; self.uses = self.uses + ['exec']
                if op in ('s_addk_i32', 's_mulk_i32', 's_cmov_b32'):
                    self.uses += self.defs
        else:
            raise ValueError('unknown instr ' + t)


class Seg:
    def __init__(self, name):
        self.name = name
        self.ins = []

    def __call__(self, text):
        out = None
        for line in text.split('\n'):
            line = line.strip()
            if not line:
                continue
            if line.endswith(':'):
                out = Ins(line, 'label')
            else:
                out = Ins(line)
            self.ins.append(out)
        return out

    def add(self, i):
        if isinstance(i, (list, tuple)):
            for x in i:
                self.add(x)
        else:
            self.ins.append(i)
        return i

    def raw(self, text):
        self.ins.append(Ins(text, 'raw'))


def I(text):
    return Ins(text)


def waitvm(tok):
    return Ins('', 'waitvm', tok)


def waitlg(tok=None):
    return Ins('', 'waitlg', tok)


def drainvm():
    return Ins('', 'drainvm')


def drainlg():
    return Ins('', 'drainlg')


def fence():
    return Ins('s_nop 15')


def legalize(path):
    vmq, lgq = [], []
    pend_vm, pend_lg = {}, {}
    names = {}
    hist = []
    pos = 0

    def req_vm(ins, tok):
        if tok in vmq:
            n = len(vmq) - 1 - vmq.index(tok)
            n = min(n, 63)
            ins.need_vm = n if ins.need_vm is None else min(ins.need_vm, n)

    def req_lg(ins, tok):
        if tok in lgq:
            n = len(lgq) - 1 - lgq.index(tok)
            n = min(n, 15)
            ins.need_lg = n if ins.need_lg is None else min(ins.need_lg, n)

    def apply_waits(ins):
        if ins.need_vm is not None and len(vmq) > ins.need_vm:
            del vmq[:len(vmq) - ins.need_vm]
        if ins.need_lg is not None and len(lgq) > ins.need_lg:
            del lgq[:len(lgq) - ins.need_lg]

    for seg in path:
        for ins in seg.ins:
            if getattr(ins, 'name', None):
                names[ins.name] = ins
            if ins.pseudo:
                if ins.pseudo == 'waitvm':
                    tok = names.get(ins.arg) if isinstance(ins.arg, str) else ins.arg
                    assert tok is not None, ins.arg
                    req_vm(ins, tok); apply_waits(ins)
                elif ins.pseudo == 'waitlg':
                    if ins.arg is None:
                        if lgq:
                            req_lg(ins, lgq[-1])
                    else:
                        req_lg(ins, ins.arg)
                    apply_waits(ins)
                elif ins.pseudo == 'drainvm':
                    vmq.clear()
                elif ins.pseudo == 'drainlg':
                    lgq.clear()
                elif ins.pseudo == 'raw':
                    pos += 1
                if ins.need_vm is not None or ins.need_lg is not None:
                    pos += 1
                continue
            touched = ins.uses + ins.defs
            for r in touched:
                if r in pend_vm:
                    req_vm(ins, pend_vm[r])
                if r in pend_lg:
                    req_lg(ins, pend_lg[r])
            apply_waits(ins)
            if ins.need_vm is not None or ins.need_lg is not None:
                pos += 1
            need = 0
            U, Dd = set(ins.uses), set(ins.defs)
            UD = U | Dd
            k = ins.kind
            isvm = k in ('vm_ld', 'vm_st', 'vm_dma')
            isds = k in ('ds_r', 'ds_w')
            for (p, h) in reversed(hist):
                dist = pos - p - 1
                if dist >= 20:
                    break
                req = 0
                hd = set(h.defs)
                if h.kind == 'valu':
                    vd = {r for r in hd if r[0] in 'va' and r != 'vcc'}
                    sd = hd - vd
                    if k == 'mfma' and vd & U:
                        req = max(req, 2)
                    if k == 'valu':
                        if h.trans and vd & U:
                            req = max(req, 1)
                        if h.dot and vd & UD and not (ins.op == h.op and not (vd & (U - Dd))):
                            req = max(req, 3)
                        if vd & U and (ins.op.startswith('v_readfirstlane') or ins.op.startswith('v_readlane')):
                            req = max(req, 1)
                        if vd & U and (ins.op.startswith('v_permlane') or ins.dpp):
                            req = max(req, 2)
                        if sd & U:
                            req = max(req, 4 if 'lane' in ins.op else 2)
                    if (isvm or isds) and h.trans and vd & U:
                        req = max(req, 1)
                    if (isvm or isds) and h.dot and vd & U:
                        req = max(req, 3)
                    if isvm and sd & U:
                        req = max(req, 5)
                    if k in ('salu', 'smem') and sd & U:
                        req = max(req, 2)
                elif h.kind == 'mfma':
                    t1 = {2: 5, 4: 8, 8: 12}[h.passes]
                    t2 = {2: 4, 4: 6, 8: 10}[h.passes]
                    t3 = {2: 1, 4: 3, 8: 7}[h.passes]
                    if k == 'mfma':
                        if hd & set(ins.ab):
                            req = max(req, t1)
                        if hd & set(ins.srcc):
                            if not (h.defs == ins.srcc and h.passes == ins.passes):
                                req = max(req, t2)
                            elif h.passes == 2:
                                req = max(req, 2)
                        elif hd & Dd:
                            req = max(req, t2)
                    elif k == 'valu' or isvm or isds:
                        if hd & UD:
                            req = max(req, t1)
                        if set(h.srcc) & Dd:
                            req = max(req, t3)
                elif h.kind == 'salu':
                    if 'm0' in hd and k == 'vm_dma':
                        req = max(req, 1)
                    if 'exec' in hd and (k == 'mfma' or (k == 'valu' and (ins.dpp or 'lane' in ins.op))):
                        req = max(req, 4)
                elif h.kind == 'vm_st':
                    if set(h.sdata) & Dd:
                        req = max(req, 2)
                if req > dist:
                    need = max(need, req - dist)
            if need > ins.need_nop:
                ins.need_nop = need
            pos += ins.need_nop
            hist.append((pos, ins))
            if len(hist) > 40:
                del hist[:20]
            pos += (int(ins.text.split()[1]) + 1) if k == 'nop' else 1
            for r in ins.defs:
                pend_vm.pop(r, None); pend_lg.pop(r, None)
            if isvm:
                vmq.append(ins)
                for r in ins.defs:
                    pend_vm[r] = ins
            elif isds:
                lgq.append(ins)
                for r in ins.defs:
                    pend_lg[r] = ins
            elif k == 'salu' and ins.op == 's_waitcnt':
                m = re.search(r'vmcnt\((\d+)\)', ins.text)
                if m and len(vmq) > int(m.group(1)):
                    del vmq[:len(vmq) - int(m.group(1))]
                m = re.search(r'lgkmcnt\((\d+)\)', ins.text)
                if m and len(lgq) > int(m.group(1)):
                    del lgq[:len(lgq) - int(m.group(1))]


def emit(seg):
    out = []
    for ins in seg.ins:
        w = []
        if ins.need_vm is not None:
            w.append(f'vmcnt({ins.need_vm})')
        if ins.need_lg is not None:
            w.append(f'lgkmcnt({ins.need_lg})')
        if w:
            out.append('s_waitcnt ' + ' '.join(w))
        n = ins.need_nop
        while n > 0:
            c = min(n, 16)
            out.append(f's_nop {c-1}'); n -= c
        if ins.text:
            out.append(ins.text)
    return out


def flat(x):
    out = []
    for i in x:
        if isinstance(i, (list, tuple)):
            out += flat(i)
        elif i is not None:
            out.append(i)
    return out


def weave(main, fill, g0=0, g1=None):
    main = flat(main); fill = flat(fill)
    if not fill:
        return main
    idx = [i for i, x in enumerate(main) if x.kind == 'mfma']
    n = len(idx)
    if g1 is None or g1 > n:
        g1 = n
    fixed = []
    for g in range(n):
        end = idx[g + 1] if g + 1 < n else len(main)
        fixed.append(sum(x.cost for x in main[idx[g] + 1:end]))
    total = sum(x.cost for x in fill)
    lo, hi = 0.0, 1e6
    for _ in range(60):
        mid = (lo + hi) / 2
        if sum(max(0.0, mid - fixed[g]) for g in range(g0, g1)) >= total:
            hi = mid
        else:
            lo = mid
    out = list(main[:idx[0]])
    cap = 0.0
    used = 0.0
    j = 0
    for g in range(n):
        end = idx[g + 1] if g + 1 < n else len(main)
        out.append(main[idx[g]])
        rest = main[idx[g] + 1:end]
        mine = []
        if g0 <= g < g1:
            cap += max(0.0, hi - fixed[g])
            while j < len(fill) and (used + fill[j].cost * 0.5 <= cap or g == g1 - 1):
                mine.append(fill[j]); used += fill[j].cost; j += 1
        nt = 0
        while nt < len(rest) and rest[len(rest) - 1 - nt].pseudo == 'waitlg':
            nt += 1
        out += rest[:len(rest) - nt] + mine + rest[len(rest) - nt:]
    assert j == len(fill)
    return out
```

```python
import sys, struct
from asmlib import *

KNAME = 'recurrent_scan__sliding_block__mixer_s_mlp__prompt_kernel'
OOB = 0x40000000

FLG = 0
ST1 = 0x8000
ST2 = 0xC000
ARR = 0x280000
HS = 0x40000
QA, KA, VT, X1, OA, SA, H3 = (HS + i * ARR for i in range(1, 8))
TS = H3 + 64 * 108 * 1024
WS_SIZE = TS + 0x40000

SLOT = 16384
NSLOT = 9
SCR = NSLOT * SLOT
XST = 7 * SLOT
LDS_SIZE = 163840

SX, SWA, SW2, SWB, SW4, SOUT, SWS, SDBG = (f's[{8+4*i}:{11+4*i}]' for i in range(8))
_sn = [40]
def S():
    _sn[0] += 1
    assert _sn[0] <= 64
    return f's{_sn[0]-1}'
sW, sW4K, sXcd, sJ, sTB1, sStrA, sLa, sLb, sLc, sO1a, sO1c, sQS = (S() for _ in range(12))
sDso, sDst, sTB2, sL2, sInv2, sStrB, sLa3, sLb3, sLc3, sCb4, sNeed2, sCb2 = (S() for _ in range(12))
sT0, sT1, sT2, sT3, sT4, sT5 = 's3', 's4', 's5', 's6', 's7', 's96'
sSpin, sKo, sVo, sTpm = 's97', 's98', 's99', 's100'
MSK = 64

vL16, vTA, vTB, vLane = 'v0', 'v1', 'v2', 'v3'
vD = ['v4', 'v5', 'v6', 'v7']
vR, vNM, vK1, vK2, vIC, vL0, vOne = 'v8', 'v9', 'v10', 'v11', 'v12', 'v13', 'v14'
vT = [f'v{i}' for i in range(16, 32)]
ACC = [32, 48, 64, 80]
AV = 96
AA = 0
WF = 160
IDL, IDH = 192, 196
ONES = 200
PX, PX1 = 224, 240

def vr(b, n): return f'v[{b}:{b+n-1}]'
def ar(b, n): return f'a[{b}:{b+n-1}]'
def f2u(x): return '0x%08x' % struct.unpack('<I', struct.pack('<f', x))[0]

LOG2E = 1.4426950408889634
C1 = -2.0 * 0.7978845608028654 * LOG2E
C2 = C1 * 0.044715
QSCALE = LOG2E / (20.0 ** 0.5)
EPS = 1e-5

OPT = dict(stop=99, ts=False)
SLOW = []
_lab = [0]
def label(p):
    _lab[0] += 1
    return f'L_{p}{_lab[0]}'


def stamp(i):
    if not OPT['ts']:
        return []
    return [I('s_memrealtime s[92:93]'), I('s_waitcnt lgkmcnt(0)'), I('v_mov_b32 v15, s92'),
            I(f's_lshl_b32 s92, s2, 8'), I(f's_lshl_b32 s93, {sW}, 6'), I('s_add_u32 s92, s92, s93'), I(f's_add_u32 s92, s92, {TS + 4*i}'),
            I(f'buffer_store_dword v15, {vL0}, {SWS}, s92 offen')]


CH = {}
def _ch(n0, n1, srd, single, col, stride, inv=None):
    for n in range(n0, n1):
        CH[n] = (srd, single, col if n == n0 else None, stride if n == n0 else None, inv)
_ch(0, 5, SWA, 0, sLa, sStrA); _ch(5, 10, SWA, 0, sLb, None); _ch(10, 13, SWA, 1, sLc, sStrA)
_ch(13, 18, SW2, 0, sL2, 1280, sInv2)
_ch(18, 23, SWB, 0, sLa3, sStrB); _ch(23, 28, SWB, 0, sLb3, None); _ch(28, 31, SWB, 1, sLc3, sStrB)
_ch(31, 45, SW4, 0, sL2, 1280, sInv2)
NCH = 45

def dma_chunk(n):
    srd, single, col, stride, inv = CH[n]
    o = []
    if stride is not None:
        if isinstance(stride, int):
            o.append(I(f's_movk_i32 {sT5}, {stride}')); stride = sT5
        if single:
            o += [I(f'v_lshrrev_b32 {vD[0]}, 2, {vLane}'), I(f's_lshl_b32 {sDst}, {sW}, 6'), I(f'v_add_u32 {vD[0]}, {sDst}, {vD[0]}'),
                  I(f'v_and_b32 {vD[1]}, 3, {vLane}'), I(f'v_lshlrev_b32 {vD[1]}, 4, {vD[1]}'),
                  I(f'v_mad_u32_u24 {vD[0]}, {vD[0]}, {stride}, {vD[1]}'),
                  I(f's_lshl_b32 {sDst}, {stride}, 4'), I(f's_sub_u32 {sDst}, {sDst}, 1024')]
        else:
            o += [I(f'v_lshrrev_b32 {vD[0]}, 3, {vLane}'), I(f's_lshl_b32 {sDst}, {sW}, 5'), I(f'v_add_u32 {vD[0]}, {sDst}, {vD[0]}'),
                  I(f'v_bfe_u32 {vD[1]}, {vLane}, 4, 1'), I(f'v_lshlrev_b32 {vD[1]}, 2, {vD[1]}'), I(f'v_and_b32 {vD[2]}, 7, {vLane}'),
                  I(f'v_xor_b32 {vD[1]}, {vD[1]}, {vD[2]}'), I(f'v_lshlrev_b32 {vD[1]}, 4, {vD[1]}'),
                  I(f'v_mad_u32_u24 {vD[0]}, {vD[0]}, {stride}, {vD[1]}'),
                  I(f's_lshl_b32 {sDst}, {stride}, 3'), I(f's_sub_u32 {sDst}, {sDst}, 1024')]
        if inv:
            o.append(I(f'v_add_u32 {vD[0]}, {inv}, {vD[0]}'))
        for i in range(1, 4):
            o.append(I(f'v_add_u32 {vD[i]}, {sDst}, {vD[i-1]}'))
        o.append(I(f's_lshl_b32 {sDst}, {stride}, {8 if single else 7}'))
    if col is not None:
        o.append(I(f's_mov_b32 {sDso}, {col}'))
    else:
        o.append(I(f's_add_u32 {sDso}, {sDso}, {sDst}'))
    o.append(I(f's_add_u32 m0, {sW4K}, {(n % NSLOT) * SLOT}'))
    for i in range(4):
        o.append(I(f'buffer_load_dwordx4 {vD[i]}, {srd}, {sDso} offen' + (f' offset:{1024*i}' if i else '') + ' lds'))
    o[-1].name = f'dma{n}'
    return o


def tr_setup(single, natural, window):
    t0, t1 = vT[14], vT[15]
    sh = 6 if single else 7
    o = [I(f'v_bfe_u32 {t0}, {vLane}, 2, 2'), I(f'v_lshrrev_b32 {t1}, 5, {vLane}'),
         I(f'v_lshl_add_u32 {t0}, {t1}, {3 if natural else 2}, {t0}'), I(f'v_lshlrev_b32 {vTA}, {sh}, {t0}'),
         I(f'v_bfe_u32 {t0}, {vLane}, 4, 1'), I(f'v_lshl_add_u32 {vTA}, {t0}, 5, {vTA}'),
         I(f'v_and_b32 {t0}, 3, {vLane}'), I(f'v_lshl_add_u32 {vTA}, {t0}, 3, {vTA}')]
    if not single:
        o += [I(f'v_bfe_u32 {t0}, {vLane}, 3, 1'), I(f'v_lshl_add_u32 {vTA}, {t0}, 6, {vTA}')]
    if window:
        o.append(I(f'v_add_u32 {vTA}, {window * 65536}, {vTA}'))
    if not single:
        o.append(I(f'v_xor_b32 {vTB}, 64, {vTA}'))
    return o


class Step:
    def __init__(self, chunk, kk, single, natural, A, accs, first, swap):
        self.chunk, self.kk, self.single, self.natural = chunk, kk, single, natural
        self.A, self.accs, self.first, self.swap = A, accs, first, swap


def phase_steps(c0, nks, single, natural, Afn, accs, swap=False):
    per = 16 if single else 8
    return [Step(c0 + k // per, k % per, single, natural, Afn(k), accs, k == 0, swap) for k in range(nks)]


class Stream:
    def __init__(self, steps, issued):
        self.steps = steps
        self.issued = issued
        self.window = None
        self.mode = None
        self.tok = {}

    def reads(self, k, blk):
        st = self.steps[k]
        o = []
        if blk == 0:
            if st.kk == 0:
                o += [waitvm(f'dma{st.chunk}'), I('s_barrier')]
            slot = st.chunk % NSLOT
            win = slot // 4
            if self.mode != (st.single, st.natural):
                o += tr_setup(st.single, st.natural, win)
                self.mode, self.window = (st.single, st.natural), win
            elif win != self.window:
                d = (win - self.window) * 65536
                op = 'v_add_u32' if d > 0 else 'v_subrev_u32'
                o.append(I(f'{op} {vTA}, {abs(d)}, {vTA}'))
                if not st.single:
                    o.append(I(f'{op} {vTB}, {abs(d)}, {vTB}'))
                self.window = win
        slot = st.chunk % NSLOT
        base = (slot % 4) * SLOT + st.kk * (1024 if st.single else 2048)
        d1 = (256 if st.single else 512) * (1 if st.natural else 2)
        w = WF + ((k % 3) * 2 + blk) * 4
        ad = vTB if blk else vTA
        o += [I(f'ds_read_b64_tr_b16 {ar(w, 2)}, {ad} offset:{base}'), I(f'ds_read_b64_tr_b16 {ar(w+2, 2)}, {ad} offset:{base + d1}')]
        self.tok[k] = o[-1]
        if blk == 0 and st.kk == 0:
            n = st.chunk + NSLOT - 2
            if n > self.issued and n < NCH:
                assert n == self.issued + 1, (n, self.issued)
                o += dma_chunk(n)
                self.issued = n
        return o

    def head(self):
        o = []
        for k in range(2):
            for b in range(len(self.steps[k].accs)):
                o += self.reads(k, b)
        return o

    def step(self, k):
        st = self.steps[k]
        nxt = self.steps[k + 2] if k + 2 < len(self.steps) else None
        o = [waitlg(self.tok[k])]
        nb = len(st.accs)
        for b in range(nb):
            w = ar(WF + ((k % 3) * 2 + b) * 4, 4)
            acc = vr(st.accs[b], 16)
            c = '0' if st.first else acc
            x, y = (st.A, w) if st.swap else (w, st.A)
            o.append(I(f'v_mfma_f32_32x32x16_bf16 {acc}, {x}, {y}, {c}'))
            if nxt is not None:
                nn = len(nxt.accs)
                for bb in range(nn):
                    if bb == b or (b == nb - 1 and bb > b):
                        o += self.reads(k + 2, bb)
        return o


def cvt_store(acc, s, soff, imm=0, voff=vL16):
    b = acc + 8 * s
    o = [I(f'v_cvt_pk_bf16_f32 v{b+i}, v{b+2*i}, v{b+2*i+1}') for i in range(4)]
    o.append(I(f'buffer_store_dwordx4 {vr(b, 4)}, {voff}, {SWS}, {soff} offen' + (f' offset:{imm}' if imm else '') + ' sc1'))
    return o


def epi_block(kind, acc, st):
    o = []
    t = vT[:4]
    for g in range(4):
        a = [f'v{acc + 4*g + i}' for i in range(4)]
        if kind == 'gelu':
            o += [I(f'v_mul_f32 {t[i]}, {a[i]}, {a[i]}') for i in range(4)]
            o += [I(f'v_fma_f32 {t[i]}, {t[i]}, {vK2}, {vK1}') for i in range(4)]
            o += [I(f'v_mul_f32 {t[i]}, {t[i]}, {a[i]}') for i in range(4)]
            o += [I(f'v_exp_f32 {t[i]}, {t[i]}') for i in range(4)]
            o += [I(f'v_fma_f32 {t[i]}, {t[i]}, {vIC}, {vIC}') for i in range(4)]
            o += [I(f'v_rcp_f32 {t[i]}, {t[i]}') for i in range(4)]
            o += [I(f'v_mul_f32 {a[i]}, {a[i]}, {t[i]}') for i in range(4)]
        elif kind == 'scale':
            o += [I(f'v_mul_f32 {a[i]}, {sQS}, {a[i]}') for i in range(4)]
        if g & 1:
            o += cvt_store(acc, g >> 1, *st[g >> 1])
    return o


def publish(tok, soff, voff=vL0):
    return [waitvm(tok), I(f'buffer_atomic_add {vOne}, {voff}, {SWS}, {soff} offen sc1')]


def poll(vaddr, vneed, srd=SWS):
    L, Ld = label('poll'), label('pd')
    v = vT[13]
    return [I(f's_mov_b32 {sSpin}, 0'), Ins(f'{L}:', 'label'),
            I(f'buffer_load_dword {v}, {vaddr}, {srd}, 0 offen sc1'), I(f's_add_u32 {sSpin}, {sSpin}, 1'),
            I('s_waitcnt vmcnt(0)'), I(f'v_cmp_lt_u32 vcc, {v}, {vneed}'), I(f's_cmp_gt_u32 {sSpin}, 0x40000'),
            I(f's_cbranch_scc1 {Ld}'), I('s_nop 1'), I(f's_cbranch_vccnz {L}'), Ins(f'{Ld}:', 'label')]


def half_sum(x, t):
    return [I(f'v_mov_b32 {t}, {x}'), I(f'v_permlane32_swap_b32 {x}, {t}'), I(f'v_add_f32 {x}, {x}, {t}')]


def ln_finish(s, q, t0, t1):
    return [I(f'v_mul_f32 {s}, {f2u(1/640)}, {s}'), I(f'v_mul_f32 {q}, {f2u(1/640)}, {q}'),
            I(f'v_fma_f32 {q}, -{s}, {s}, {q}'), I(f'v_max_f32 {q}, 0, {q}'),
            I(f'v_add_f32 {t0}, {f2u(EPS)}, {q}'), I(f'v_rsq_f32 {vR}, {t0}'),
            I(f'v_mul_f32 {vNM}, {s}, {vR}'), I(f'v_sub_f32 {vNM}, 0, {vNM}')]


def norm_pair(j, raw):
    d = ACC[2 + (j & 1)]
    m = [I(f'v_mfma_f32_32x32x16_bf16 {vr(d, 16)}, {ar(IDL, 4)}, {raw(2*j)}, 0'),
         I(f'v_mfma_f32_32x32x16_bf16 {vr(d, 16)}, {ar(IDH, 4)}, {raw(2*j+1)}, {vr(d, 16)}')]
    v = []
    for hlf in range(2):
        v += [I(f'v_fma_f32 v{d+8*hlf+i}, v{d+8*hlf+i}, {vR}, {vNM}') for i in range(8)]
        v += [I(f'v_cvt_pk_bf16_f32 v{AV+8*j+4*hlf+i}, v{d+8*hlf+2*i}, v{d+8*hlf+2*i+1}') for i in range(4)]
    return m, v


def big_gemm(seg, c0, issued, natural, raw, Afn, kind, swap, stores, pre_pa=None):
    steps = (phase_steps(c0, 40, 0, natural, Afn, ACC[0:2], swap) + phase_steps(c0 + 5, 40, 0, natural, Afn, ACC[2:4], swap)
             + phase_steps(c0 + 10, 40, 1, natural, Afn, ACC[0:1], swap))
    st = Stream(steps, issued)
    if raw is not None:
        NP = [norm_pair(j, raw) for j in range(20)]
        seg.add(NP[0][0]); seg.add(NP[1][0])
        seg.add(st.head())
        seg.add(NP[0][1])
        for j in range(20):
            body = []
            if j + 2 < 20:
                body += NP[j + 2][0]
            body += st.step(2 * j) + st.step(2 * j + 1)
            seg.add(weave(body, NP[j + 1][1] if j + 1 < 20 else []))
    else:
        seg.add(st.head())
        for k in range(40):
            if pre_pa:
                seg.add(pre_pa(k))
            seg.add(st.step(k))
    pb = flat([st.step(k) for k in range(40, 80)])
    seg.add(weave(pb, epi_block(kind, ACC[0], stores[0]) + epi_block(kind, ACC[1], stores[1]), 2, 78))
    pc = flat([st.step(k) for k in range(80, 120)])
    seg.add(weave(pc, epi_block(kind, ACC[2], stores[2]) + epi_block(kind, ACC[3], stores[3]), 2))
    last = epi_block(kind, ACC[0], stores[4])
    seg.add(last)
    return st.issued, last[-1]


def xtile_voffs(dst, row0, tmp, check):
    o = []
    for i in range(4):
        o += [I(f'v_lshrrev_b32 {tmp[0]}, 4, {vLane}'), I(f'v_add_u32 {tmp[0]}, {4*i}, {tmp[0]}'), I(f'v_xor_b32 {tmp[0]}, {tmp[0]}, {vLane}'),
              I(f'v_and_b32 {tmp[0]}, 7, {tmp[0]}'), I(f'v_lshlrev_b32 {tmp[0]}, 4, {tmp[0]}'),
              I(f'v_lshrrev_b32 {tmp[1]}, 3, {vLane}'), I(f'v_add3_u32 {tmp[1]}, {tmp[1]}, {row0}, {8*i}'),
              I(f'v_mul_u32_u24 {dst[i]}, 1280, {tmp[1]}'), I(f'v_add_u32 {dst[i]}, {dst[i]}, {tmp[0]}')]
        if i:
            o.append(I(f'v_subrev_u32 {dst[i]}, {1024*i}, {dst[i]}'))
        if check:
            o += [I(f'v_cmp_gt_u32 vcc, 2048, {tmp[1]}'), I(f'v_mov_b32 {tmp[0]}, {OOB}'), I(f'v_cndmask_b32 {dst[i]}, {tmp[0]}, {dst[i]}, vcc')]
    return o


def prologue():
    s = Seg('pro')
    s(f'''s_cmp_lt_u32 s2, 256
s_cbranch_scc1 L_go
s_endpgm
L_go:
s_load_dwordx16 s[64:79], s[0:1], 0
s_load_dwordx4 s[80:83], s[0:1], 64
s_load_dwordx2 s[84:85], s[0:1], 80
v_lshrrev_b32 v1, 6, v0
v_and_b32 {vLane}, 63, v0
v_readfirstlane_b32 {sW}, v1
v_lshlrev_b32 {vL16}, 4, {vLane}
v_cmp_eq_u32 vcc, 0, {vLane}
v_mov_b32 {vL0}, {OOB}
v_mov_b32 {vOne}, 1
v_cndmask_b32 {vL0}, {vL0}, 0, vcc
s_lshl_b32 {sW4K}, {sW}, 12
s_and_b32 {sXcd}, s2, 7
s_lshr_b32 {sJ}, s2, 3
s_lshr_b32 {sCb4}, {sJ}, 3
s_and_b32 {sT0}, {sXcd}, 1
s_lshl_b32 {sT0}, {sT0}, 3
s_and_b32 {sT1}, {sJ}, 7
s_add_u32 {sT0}, {sT0}, {sT1}
s_lshl_b32 {sT0}, {sT0}, 2
s_add_u32 {sTB1}, {sT0}, {sW}
s_lshr_b32 {sT2}, {sXcd}, 1''')
    s(f'''s_lshr_b32 {sT0}, {sCb4}, 1
s_add_u32 {sT0}, {sT0}, 1
s_sub_u32 {sT1}, 0, {sT0}
s_bitcmp1_b32 {sCb4}, 0
s_cselect_b32 {sT0}, {sT0}, {sT1}
s_cmp_eq_u32 {sT2}, 0
s_cselect_b32 {sT0}, {sT0}, 0
s_lshl_b32 {sT1}, {sTB1}, 5
s_add_u32 {sT4}, {sT1}, {sT0}''')
    xv = ['v32', 'v33', 'v34', 'v35']
    s.add(xtile_voffs(xv, sT4, ['v36', 'v37'], True))
    s(f'''s_waitcnt lgkmcnt(0)
s_mov_b32 s8, s64
s_mov_b32 s9, s65
s_mov_b32 s10, 2621440
s_mov_b32 s11, 0x20000
s_mul_i32 {sT0}, {sW}, 12288
s_add_u32 {sT5}, {sT0}, {XST}''')
    xtok = {}
    def xdma(c):
        o = [I(f's_add_u32 m0, {sT5}, {4096 * (c % 3)}'), I(f's_movk_i32 {sT3}, {128 * c}')]
        for i in range(4):
            o.append(I(f'buffer_load_dwordx4 {xv[i]}, {SX}, {sT3} offen' + (f' offset:{1024*i}' if i else '') + ' lds'))
        xtok[c] = o[-1]
        return o
    for c in range(3):
        s.add(xdma(c))
    s(f'''s_cmp_eq_u32 {sT2}, 0
s_cselect_b32 s12, s72, s66
s_cselect_b32 s13, s73, s67
s_mov_b32 s14, 2457600
s_cselect_b32 s14, 819200, s14
s_movk_i32 {sStrA}, 3840
s_cselect_b32 {sStrA}, 1280, {sStrA}
s_cselect_b32 s20, s68, s76
s_cselect_b32 s21, s69, s77
s_mov_b32 s22, 2211840
s_cselect_b32 s22, 819200, s22
s_movk_i32 {sStrB}, 3456
s_cselect_b32 {sStrB}, 1280, {sStrB}
s_mov_b32 s15, 0x20000
s_mov_b32 s23, 0x20000
s_mov_b32 s16, s74
s_mov_b32 s17, s75
s_mov_b32 s18, 819200
s_mov_b32 s19, 0x20000
s_mov_b32 s24, s78
s_mov_b32 s25, s79
s_mov_b32 s26, 2211840
s_mov_b32 s27, 0x20000
s_mov_b32 s28, s80
s_mov_b32 s29, s81
s_mov_b32 s30, 2621440
s_mov_b32 s31, 0x20000
s_mov_b32 s32, s84
s_mov_b32 s33, s85
s_mov_b32 s34, {WS_SIZE}
s_mov_b32 s35, 0x20000
s_mov_b32 s36, s82
s_mov_b32 s37, s83
s_mov_b32 s38, 256
s_mov_b32 s39, 0x20000''')
    s.add(stamp(0))
    s(f'''s_cmp_lg_u32 s2, 0
s_cbranch_scc1 L_noclr
v_mov_b32 v40, 0
v_mov_b32 v41, 0
v_mov_b32 v42, 0
v_mov_b32 v43, 0
s_lshl_b32 {sT0}, {sW}, 13''')
    for i in range(8):
        s.raw(f'buffer_store_dwordx4 v[40:43], {vL16}, {SWS}, {sT0} offen sc1')
        s(f's_add_u32 {sT0}, {sT0}, 1024')
    s.raw('s_waitcnt vmcnt(0)')
    s.raw(f'buffer_atomic_add {vOne}, {vL0}, {SDBG}, 0 offen sc1')
    s.raw('s_waitcnt vmcnt(0)')
    s('L_noclr:')
    s(f'''s_sub_u32 {sT0}, {sT2}, 1
s_max_i32 {sT0}, {sT0}, 0
s_lshl_b32 {sT0}, {sT0}, 2
s_add_u32 {sT0}, {sT0}, {sCb4}
s_mul_i32 {sT1}, {sT0}, 320
s_and_b32 {sT3}, {sCb4}, 1
s_lshl_b32 {sT4}, {sT3}, 6
s_add_u32 {sLa}, {sT1}, {sT4}
s_add_u32 {sLb}, {sLa}, 128
s_xor_b32 {sT4}, {sT3}, 1
s_lshl_b32 {sT4}, {sT4}, 8
s_add_u32 {sLc}, {sT1}, {sT4}
s_mul_i32 {sT1}, {sT2}, {ARR}
s_add_u32 {sT1}, {sT1}, {HS}
s_mul_i32 {sT4}, {sTB1}, 40960
s_add_u32 {sT1}, {sT1}, {sT4}
s_cmp_eq_u32 {sT2}, 3
s_movk_i32 {sT4}, 2048
s_cselect_b32 {sT4}, 512, {sT4}
s_mul_i32 {sO1a}, {sCb4}, 5
s_add_u32 {sO1c}, {sO1a}, 4
s_add_u32 {sO1a}, {sO1a}, {sT3}
s_lshl_b32 {sT3}, {sT3}, 2
s_sub_u32 {sO1c}, {sO1c}, {sT3}
s_mul_i32 {sO1a}, {sO1a}, {sT4}
s_mul_i32 {sO1c}, {sO1c}, {sT4}
s_add_u32 {sO1a}, {sO1a}, {sT1}
s_add_u32 {sO1c}, {sO1c}, {sT1}
s_cmp_eq_u32 {sT2}, 1
s_cselect_b32 {sQS}, {f2u(QSCALE)}, 1.0''')
    s(f'''s_mul_i32 {sT1}, {sT0}, 9
s_lshr_b32 {sT1}, {sT1}, 1
s_mul_i32 {sT3}, {sCb4}, 5
s_cmp_eq_u32 {sT2}, 0
s_cselect_b32 {sT1}, {sT3}, {sT1}
s_and_b32 {sT3}, {sT1}, 1
s_add_u32 {sLa3}, {sT1}, {sT3}
s_lshl_b32 {sLa3}, {sLa3}, 6
s_add_u32 {sLb3}, {sLa3}, 128
s_xor_b32 {sT3}, {sT3}, 1
s_lshl_b32 {sT3}, {sT3}, 2
s_add_u32 {sLc3}, {sT1}, {sT3}
s_lshl_b32 {sLc3}, {sLc3}, 6''')
    s(f'''s_mul_i32 {sT0}, {sT2}, 28
s_add_u32 {sT0}, {sT0}, {sJ}
s_mul_i32 {sT1}, {sT0}, 205
s_lshr_b32 {sT1}, {sT1}, 10
s_mul_i32 {sT3}, {sT1}, 5
s_sub_u32 {sT3}, {sT0}, {sT3}
s_and_b32 {sT4}, {sXcd}, 1
s_mul_i32 {sT4}, {sT4}, 5
s_add_u32 {sCb2}, {sT3}, {sT4}
s_lshl_b32 {sL2}, {sCb2}, 7
s_cmp_lt_u32 {sJ}, 28
s_cselect_b32 {sT0}, {sT0}, 999
s_cmp_lt_u32 {sT0}, 110
s_cselect_b32 {sInv2}, 0, {OOB}
s_cselect_b32 {sT3}, {sW}, 3
s_mul_i32 {sTB2}, {sT1}, 3
s_add_u32 {sTB2}, {sTB2}, {sW}
s_cmp_lt_u32 {sT3}, 3
s_cselect_b32 {sTB2}, {sTB2}, 64
s_cmp_lt_u32 {sTB2}, 64
s_cselect_b32 {sNeed2}, 1, 0
s_min_u32 {sTB2}, {sTB2}, 64''')
    s(f'''v_and_b32 v36, 31, {vLane}
v_lshrrev_b32 v37, 5, {vLane}
v_lshlrev_b32 v37, 2, v37
v_sub_u32 v36, v36, v37
v_mov_b32 v38, 0x3f80
v_mov_b32 v39, 0x3f800000
v_mov_b32 v41, 0x3f803f80''')
    for hi in range(2):
        for d in range(4):
            b = 16 * hi + 8 * (d >> 1) + 2 * (d & 1)
            s(f'''v_cmp_eq_u32 vcc, {b}, v36
v_cndmask_b32 v37, 0, v38, vcc
v_cmp_eq_u32 vcc, {b+1}, v36
v_cndmask_b32 v37, v37, v39, vcc
v_accvgpr_write_b32 a{IDL + 4*hi + d}, v37''')
    for d in range(4):
        s(f'v_accvgpr_write_b32 a{ONES + d}, v41')
    ra = ['v36', 'v37', 'v38', 'v39']
    s(f'''v_and_b32 v40, 31, {vLane}
v_lshlrev_b32 v41, 7, v40
v_add_u32 v41, {sT5}, v41
v_bfe_u32 v40, {vLane}, 1, 3
v_lshrrev_b32 v42, 5, {vLane}
v_xor_b32 v40, v40, v42''')
    for q in range(4):
        s(f'v_xor_b32 {ra[q]}, {2*q}, v40\nv_lshl_add_u32 {ra[q]}, {ra[q]}, 4, v41')
    sa = ['v40', 'v41', 'v42', 'v43']
    for r in sa:
        s(f'v_mov_b32 {r}, 0')
    def stats(c):
        o = []
        for d in range(16):
            x = f'v{AV + 16*c + d}'
            o += [I(f'v_dot2c_f32_bf16 {sa[d & 1]}, 0x3f803f80, {x}'), I(f'v_dot2c_f32_bf16 {sa[2 + (d & 1)]}, {x}, {x}')]
        return o
    issued = -1
    for c in range(10):
        s.add(waitvm(xtok[c]))
        rd = [I(f'ds_read_b128 {vr(AV + 16*c + 4*q, 4)}, {ra[q]} offset:{4096 * (c % 3)}') for q in range(4)]
        s.add(rd)
        if c:
            s.add(stats(c - 1))
        s.add(waitlg(rd[-1]))
        if c + 3 < 10:
            s.add(xdma(c + 3))
        else:
            n = {7: 2, 8: 2, 9: 3}[c]
            for _ in range(n):
                issued += 1
                s.add(dma_chunk(issued))
    s.add(stats(9))
    s(f'v_add_f32 v40, v40, v41\nv_add_f32 v42, v42, v43')
    s.add(half_sum('v40', 'v41')); s.add(half_sum('v42', 'v43'))
    s.add(ln_finish('v40', 'v42', 'v41', 'v43'))
    s(f'''v_mul_f32 v42, v42, {vR}
v_mul_f32 v42, v42, {vR}
v_add_f32 v42, {f2u(EPS)}, v42
v_rsq_f32 v43, v42
v_mul_f32 {vK1}, {f2u(C1)}, v43
v_mul_f32 {vIC}, v42, v43
v_mul_f32 v41, v43, v43
v_mul_f32 v41, v41, v43
v_mul_f32 {vK2}, {f2u(C2)}, v41''')
    s(f'''s_lshr_b32 {sT2}, {sXcd}, 1
s_lshl_b32 {sT0}, {sTB1}, 8
s_add_u32 {sT0}, {sT0}, {ST1}
s_lshl_b32 {sT1}, {sT2}, 2
s_add_u32 {sT1}, {sT1}, {sCb4}
s_cmp_eq_u32 {sT1}, 4
s_cselect_b32 {sT0}, {sT0}, {OOB}
v_and_b32 v40, 31, {vLane}
v_lshlrev_b32 v40, 3, v40
buffer_store_dwordx2 v[8:9], v40, {SWS}, {sT0} offen sc1''')
    s.add(stamp(1))
    s(f'''s_cmp_eq_u32 {sT2}, 0
s_cbranch_scc1 L_s1h
s_cmp_eq_u32 {sT2}, 3
s_cbranch_scc1 L_s1v''')
    return s, issued


def ready_wait():
    return [I(f'v_mov_b32 {vT[10]}, 0'), I(f'v_mov_b32 {vT[11]}, 4')] + poll(vT[10], vT[11], SDBG)


def stage1(role, issued):
    s = Seg('s1' + role)
    if role != 'qk':
        s(f'L_s1{role}:')
    A = lambda k: vr(AV + 4 * k, 4)
    if role == 'v':
        v0, v1 = vT[8], vT[9]
        s(f'''v_lshrrev_b32 {v0}, 5, {vLane}
v_mul_u32_u24 {v0}, {10240 - 512}, {v0}
v_add_u32 {v0}, {v0}, {vL16}
v_add_u32 {v1}, 20480, {v0}''')
        stores = [[(sO1a, 512 * b, v0), (sO1a, 512 * b, v1)] for b in range(4)] + [[(sO1c, 0, v0), (sO1c, 0, v1)]]
    else:
        s(f's_add_u32 {sT4}, {sO1a}, 4096')
        stores = [[(sO1a if b < 2 else sT4, 2048 * (b & 1) + 1024 * u, vL16) for u in range(2)] for b in range(4)] + [[(sO1c, 1024 * u, vL16) for u in range(2)]]
    kind = {'h': 'gelu', 'qk': 'scale', 'v': 'none'}[role]
    issued, last = big_gemm(s, 0, issued, True, A, A, kind, role == 'v', stores)
    s.add(stamp(2))
    s.add(ready_wait())
    s(f'''s_lshr_b32 {sT2}, {sXcd}, 1
s_lshl_b32 {sT2}, {sT2}, 2
s_add_u32 {sT2}, {sT2}, {sCb4}
s_lshl_b32 {sT2}, {sT2}, 2
s_lshl_b32 {sT0}, {sTB1}, 7
s_add_u32 {sT0}, {sT0}, {sT2}''')
    s.add(publish(last, sT0))
    if role != 'v':
        s('s_branch L_s2')
    return s, issued


def flag_poll(stage, tb, i0, n, need):
    a, nd = vT[10], vT[11]
    return [I(f's_lshl_b32 {sT0}, {tb}, 7'), I(f's_add_u32 {sT0}, {sT0}, {FLG + stage * 8192 + 4 * i0}'),
            I(f'v_lshlrev_b32 {a}, 2, {vLane}'), I(f'v_add_u32 {a}, {sT0}, {a}'),
            I(f'v_cmp_gt_u32 vcc, {n}, {vLane}'), I(f'v_mov_b32 {nd}, {need}'), I(f'v_cndmask_b32 {nd}, 0, {nd}, vcc'),
            I(f'v_cndmask_b32 {a}, 0, {a}, vcc')] + poll(a, nd)


def tile_lds_addr(dst, tmp):
    return [I(f'v_and_b32 {tmp}, 31, {vLane}'), I(f'v_lshlrev_b32 {dst}, 7, {tmp}'), I(f'v_bfe_u32 {tmp}, {vLane}, 1, 3'),
            I(f'v_lshl_add_u32 {dst}, {tmp}, 4, {dst}'), I(f'v_lshrrev_b32 {tmp}, 5, {vLane}'), I(f'v_lshl_add_u32 {dst}, {tmp}, 3, {dst}'),
            I(f'v_add_u32 {dst}, {sW4K}, {dst}'), I(f'v_add_u32 {dst}, {SCR}, {dst}')]


def stage2(issued):
    s = Seg('s2')
    s('L_s2:')
    xv = ['v96', 'v97', 'v98', 'v99']
    s(f's_lshl_b32 {sT4}, {sTB2}, 5')
    s.add(xtile_voffs(xv, sT4, ['v100', 'v101'], False))
    s(f's_add_u32 m0, {sW4K}, {SCR}')
    for i in range(4):
        xt = s(f'buffer_load_dwordx4 {xv[i]}, {SX}, {sL2} offen' + (f' offset:{1024*i}' if i else '') + ' lds')
    s.add(flag_poll(0, sTB2, 0, 5, sNeed2))
    s.add(stamp(3))
    s(f'''s_mul_i32 {sT1}, {sTB2}, 40960
s_add_u32 {sT1}, {sT1}, {HS}
s_cmp_eq_u32 {sNeed2}, 0
s_cselect_b32 {sT1}, {OOB}, {sT1}''')
    for k in range(40):
        if k and k % 4 == 0:
            s(f's_add_u32 {sT1}, {sT1}, 4096')
        s(f'buffer_load_dwordx4 {ar(AA + 4*k, 4)}, {vL16}, {SWS}, {sT1} offen' + (f' offset:{1024*(k%4)}' if k % 4 else '') + ' sc1')
        if k == 7:
            s(f'''s_lshl_b32 {sT0}, {sTB2}, 8
s_add_u32 {sT0}, {sT0}, {ST1}
v_and_b32 v100, 31, {vLane}
v_lshlrev_b32 v100, 3, v100
buffer_load_dwordx2 v[8:9], v100, {SWS}, {sT0} offen sc1''')
    st = Stream(phase_steps(13, 40, 0, False, lambda k: ar(AA + 4 * k, 4), ACC[0:2]), issued)
    s.add(st.head())
    xr = 104
    fill = tile_lds_addr('v100', 'v101')
    for c in range(8):
        fill += [I(f'v_xor_b32 v101, {16*c}, v100'), I(f'ds_read_b64 {vr(xr + 2*c, 2)}, v101')]
    for d in range(16):
        fill += [I(f'v_lshlrev_b32 v{120+2*d}, 16, v{xr+d}'), I(f'v_and_b32 v{121+2*d}, 0xffff0000, v{xr+d}'),
                 I(f'v_accvgpr_write_b32 a{PX+d}, v{xr+d}'),
                 I(f'v_fma_f32 v{120+2*d}, v{120+2*d}, {vR}, {vNM}'), I(f'v_fma_f32 v{121+2*d}, v{121+2*d}, {vR}, {vNM}')]
    s.add(weave([st.step(k) for k in range(40)], fill, 30, 78))
    issued = st.issued
    s('s_barrier')
    for _ in range(2):
        issued += 1
        s.add(dma_chunk(issued))
    s(f'''s_mul_i32 {sT1}, {sTB2}, 40960
s_lshl_b32 {sT2}, {sCb2}, 12
s_add_u32 {sT1}, {sT1}, {sT2}
s_add_u32 {sT1}, {sT1}, {X1}
s_cmp_eq_u32 {sNeed2}, 0
s_cselect_b32 {sT1}, {OOB}, {sT1}''')
    s('v_mov_b32 v104, 0\nv_mov_b32 v105, 0\nv_mov_b32 v106, 0\nv_mov_b32 v107, 0')
    for q in range(4):
        b = ACC[0] + 8 * q
        for i in range(8):
            s(f'v_add_f32 v{b+i}, v{b+i}, v{120+8*q+i}')
        for i in range(8):
            s(f'v_add_f32 v{104+2*(i&1)}, v{104+2*(i&1)}, v{b+i}\nv_fmac_f32 v{105+2*(i&1)}, v{b+i}, v{b+i}')
        s.add(cvt_store(ACC[q >> 1], q & 1, sT1, 1024 * q))
        for i in range(4):
            s(f'v_accvgpr_write_b32 a{PX1+4*q+i}, v{b+i}')
    s('v_add_f32 v104, v104, v106\nv_add_f32 v105, v105, v107')
    s.add(half_sum('v104', 'v106')); s.add(half_sum('v105', 'v107'))
    s(f'''s_mul_i32 {sT1}, {sTB2}, 10
s_add_u32 {sT1}, {sT1}, {sCb2}
s_lshl_b32 {sT1}, {sT1}, 8
s_add_u32 {sT1}, {sT1}, {ST2}
s_lshl_b32 {sT0}, {sTB2}, 7
s_lshl_b32 {sT2}, {sCb2}, 2
s_add_u32 {sT0}, {sT0}, {sT2}
s_add_u32 {sKo}, {sT0}, {FLG + 8192}
s_cmp_eq_u32 {sNeed2}, 0
s_cselect_b32 {sT1}, {OOB}, {sT1}
s_cselect_b32 {sKo}, {OOB}, {sKo}
v_and_b32 v100, 31, {vLane}
v_lshlrev_b32 v100, 3, v100''')
    last = s(f'buffer_store_dwordx2 v[104:105], v100, {SWS}, {sT1} offen sc1')
    s.add(publish(last, sKo))
    s.add(stamp(4))
    return s, issued


def attention():
    s = Seg('att')
    SB, OB, QB, PB, PM, NB = 96, [32, 48], [64, 72], [80, 88], 240, 248
    KB, VB = 0, 80
    a, nd, t0, t1 = vT[10], vT[11], vT[0], vT[1]
    s(f'''s_lshl_b32 {sTpm}, {sJ}, 1
s_sub_u32 {sTpm}, {sTpm}, 8
v_and_b32 {t0}, 15, {vLane}
v_lshrrev_b32 {t1}, 4, {vLane}
v_cmp_eq_u32 vcc, 2, {t1}
v_mov_b32 {a}, 10
v_cndmask_b32 {a}, {a}, 2, vcc
v_cndmask_b32 {nd}, 0, 8, vcc
v_cmp_lt_u32 s[4:5], {t0}, {a}
v_add3_u32 {t0}, {t0}, {nd}, {sTpm}
v_max_i32 {t0}, 0, {t0}
v_lshlrev_b32 {t0}, 7, {t0}
v_lshlrev_b32 {a}, 4, {t1}
v_add_u32 {a}, 32, {a}
v_cndmask_b32 {a}, {a}, 16, vcc
s_lshr_b32 {sT0}, {sXcd}, 1
s_lshl_b32 {sT0}, {sT0}, 2
v_add3_u32 {a}, {a}, {t0}, {sT0}
v_cmp_gt_u32 vcc, 3, {t1}
s_and_b64 vcc, vcc, s[4:5]
v_cndmask_b32 {nd}, 0, 1, vcc
v_cndmask_b32 {a}, 0, {a}, vcc''')
    s.add(poll(a, nd))
    s.add(stamp(5))
    s(f'''s_mul_i32 {sT0}, {sXcd}, 5
s_add_u32 {sT0}, {sT0}, {sW}
s_lshl_b32 {sT0}, {sT0}, 10
s_mul_i32 {sT1}, {sJ}, 81920
s_add_u32 {sT1}, {sT1}, {sT0}
s_add_u32 {sT1}, {sT1}, {QA}''')
    for u in range(2):
        for h in range(2):
            s(f'buffer_load_dwordx4 {vr(QB[u] + 4*h, 4)}, {vL16}, {SWS}, {sT1} offen' + (' offset:1024' if h else '') + ' sc1')
        s(f's_add_u32 {sT1}, {sT1}, 40960')
    s(f's_add_u32 {sT0}, {sT0}, {KA}')
    for i in range(10):
        s(f'''s_add_u32 {sT1}, {sTpm}, {i}
s_max_i32 {sT1}, {sT1}, 0
s_mul_i32 {sT1}, {sT1}, 40960
s_add_u32 {sT1}, {sT1}, {sT0}''')
        for h in range(2):
            s(f'buffer_load_dwordx4 {ar(KB + 8*i + 4*h, 4)}, {vL16}, {SWS}, {sT1} offen' + (' offset:1024' if h else '') + ' sc1')
    s(f'v_mov_b32 {t0}, 0x3f803f80')
    for r in range(80):
        s(f'v_accvgpr_write_b32 a{VB + r}, {t0}')
    v0, v1 = vT[2], vT[3]
    s(f'''v_lshrrev_b32 {v0}, 5, {vLane}
v_mul_u32_u24 {v0}, {10240 - 512}, {v0}
v_add_u32 {v0}, {v0}, {vL16}
v_add_u32 {v1}, 20480, {v0}
s_lshl_b32 {sT0}, {sXcd}, 2
s_add_u32 {sT0}, {sT0}, {sW}
s_mul_i32 {sT0}, {sT0}, 320
s_add_u32 {sT0}, {sT0}, {VT}
s_mov_b32 exec_lo, 0xfffff
s_mov_b32 exec_hi, 0xfffff''')
    for i in range(10):
        s(f'''s_add_u32 {sT1}, {sTpm}, {i}
s_max_i32 {sT1}, {sT1}, 0
s_mul_i32 {sT1}, {sT1}, 40960
s_add_u32 {sT1}, {sT1}, {sT0}''')
        for h in range(2):
            s(f'buffer_load_dwordx4 {ar(VB + 8*i + 4*h, 4)}, {v1 if h else v0}, {SWS}, {sT1} offen sc1')
    s('s_mov_b64 exec, -1')
    for r in range(16):
        j = 8 * (r >> 2) + (r & 3)
        s(f's_mov_b32 s{MSK+2*r}, 0x{(0xffffffff << j) & 0xffffffff:x}\ns_mov_b32 s{MSK+2*r+1}, 0x{(0xffffffff << (j + 4)) & 0xffffffff:x}')
    m = lambda r: f's[{MSK+2*r}:{MSK+2*r+1}]'
    s(f'v_mov_b32 {t0}, 0xffff\nv_mov_b32 {t1}, 0xffff0000')
    for d in range(8):
        s(f'v_cndmask_b32 v{PM+d}, 0, {t0}, {m(2*d)}\nv_cndmask_b32 {vT[4]}, 0, {t1}, {m(2*d+1)}\nv_or_b32 v{PM+d}, v{PM+d}, {vT[4]}')
    s(f'v_mov_b32 v{NB+1}, 0\nv_mov_b32 v{NB+2}, 0\nv_mov_b32 v{NB+3}, 0')
    s(f'v_lshrrev_b32 {t0}, 5, {vLane}\nv_subrev_u32 {t0}, {sW}, {t0}')
    for p in range(4):
        s(f'v_add_u32 {t1}, {2*p}, {t0}\nv_cmp_gt_u32 vcc, 5, {t1}')
        for u in range(2):
            for d in range(2):
                s(f'v_cndmask_b32 v{QB[u]+2*p+d}, 0, v{QB[u]+2*p+d}, vcc')
    oa = [vT[5], vT[6], vT[7]]
    s(f's_mul_i32 {sT0}, {sW}, 5\nv_lshrrev_b32 {t0}, 5, {vLane}\nv_and_b32 {vT[4]}, 31, {vLane}\nv_lshlrev_b32 {vT[4]}, 4, {vT[4]}\nv_add_u32 {vT[4]}, {SCR}, {vT[4]}')
    for q in range(3):
        if q < 2:
            s(f'v_add3_u32 {t1}, {t0}, {sT0}, {2*q}')
        else:
            s(f's_add_u32 {sT0}, {sT0}, 4\nv_mov_b32 {t1}, {sT0}')
        s(f'''v_lshrrev_b32 {oa[q]}, 2, {t1}
v_lshl_add_u32 {oa[q]}, {oa[q]}, 10, {vT[4]}
v_and_b32 {vT[8]}, 1, {t1}
v_lshl_add_u32 {oa[q]}, {vT[8]}, 9, {oa[q]}
v_bfe_u32 {vT[8]}, {t1}, 1, 1
v_lshl_add_u32 {oa[q]}, {vT[8]}, 3, {oa[q]}''')
    s(f'''v_cmp_gt_u32 vcc, 32, {vLane}
v_lshlrev_b32 {t1}, 3, {vLane}
v_add_u32 {t1}, {SCR + 10240}, {t1}
v_cndmask_b32 {oa[2]}, {t1}, {oa[2]}, vcc''')

    Sb = lambda i: SB + 16 * i
    mx = [vT[8], vT[9]]
    def qk(u, i):
        d = vr(Sb(i), 16)
        return [I(f'v_mfma_f32_32x32x16_bf16 {d}, {ar(KB + 8*(i+u), 4)}, {vr(QB[u], 4)}, 0'),
                I(f'v_mfma_f32_32x32x16_bf16 {d}, {ar(KB + 8*(i+u) + 4, 4)}, {vr(QB[u] + 4, 4)}, {d}')]
    def fix(u, i):
        L, Lr = label('fx'), label('fr')
        SLOW.append(f'{L}:\ns_nop 15\n' + '\n'.join(f'v_mov_b32 v{Sb(i)+r}, 0xf149f2ca' for r in range(16)) + f'\ns_nop 1\ns_branch {Lr}')
        br = I(f's_cbranch_scc1 {L}')
        br.text += f'\n{Lr}:'
        return [I(f's_cmp_lt_i32 {sTpm}, {-(i+u)}'), br]
    def mxblk(i, first):
        o = []
        for r in range(0, 16, 2):
            mm = mx[(r >> 1) & 1]
            if first and r < 4:
                o.append(I(f'v_max_f32 {mm}, v{Sb(i)+r}, v{Sb(i)+r+1}'))
            else:
                o.append(I(f'v_max3_f32 {mm}, v{Sb(i)+r}, v{Sb(i)+r+1}, {mm}'))
        return o
    def combine():
        return [I(f'v_cndmask_b32 v{Sb(8)+r}, v{Sb(0)+r}, v{Sb(8)+r}, {m(r)}') for r in range(16)]
    def negm():
        x, y, z = mx[0], mx[1], vT[0]
        return [I(f'v_max_f32 {x}, {x}, {y}'), I(f'v_mov_b32 {y}, {x}'), I(f'v_permlane32_swap_b32 {x}, {y}'), I(f'v_max_f32 {x}, {x}, {y}'),
                I(f'v_sub_f32 {x}, 0, {x}'), I(f'v_and_b32 {y}, 0xffff0000, {x}'), I(f'v_sub_f32 {x}, {x}, {y}'),
                I(f'v_and_b32 {z}, 0xffff0000, {x}'), I(f'v_sub_f32 {x}, {x}, {z}'),
                I(f'v_lshrrev_b32 {y}, 16, {y}'), I(f'v_or_b32 {y}, {y}, {z}'), I(f'v_lshrrev_b32 {x}, 16, {x}'),
                I(f'v_cmp_gt_u32 vcc, 32, {vLane}'), I(f'v_cndmask_b32 v{NB}, {x}, {y}, vcc')]
    def sub(i):
        d = vr(Sb(i), 16)
        return I(f'v_mfma_f32_32x32x16_bf16 {d}, {ar(ONES, 4)}, {vr(NB, 4)}, {d}')
    def expcvt(i, p):
        o = []
        for q in range(2):
            o += [I(f'v_exp_f32 v{Sb(i)+8*q+r}, v{Sb(i)+8*q+r}') for r in range(8)]
            o += [I(f'v_cvt_pk_bf16_f32 v{p+4*q+r}, v{Sb(i)+8*q+2*r}, v{Sb(i)+8*q+2*r+1}') for r in range(4)]
        return o
    def pv(u, i, p, first):
        d = vr(OB[u], 16)
        return [I(f'v_mfma_f32_32x32x16_bf16 {d}, {ar(VB + 8*(i+u), 4)}, {vr(p, 4)}, {"0" if first else d}'),
                I(f'v_mfma_f32_32x32x16_bf16 {d}, {ar(VB + 8*(i+u) + 4, 4)}, {vr(p + 4, 4)}, {d}')]
    def mix(valu, mf):
        valu, mf = flat(valu), flat(mf)
        o, tot, acc, j = [], sum(x.cost for x in valu), 0, 0
        for x in valu:
            while j < len(mf) and acc >= tot * j / len(mf):
                o.append(mf[j]); j += 1
            o.append(x); acc += x.cost
        return o + mf[j:]
    def finish(u):
        o = [I(f'v_rcp_f32 {vT[0]}, v{OB[u]+12}')]
        o += [I(f'v_mul_f32 v{OB[u]+r}, v{OB[u]+r}, {vT[0]}') for r in range(12)]
        o += [I(f'v_cvt_pk_bf16_f32 v{OB[u]+r}, v{OB[u]+2*r}, v{OB[u]+2*r+1}') for r in range(6)]
        o += [I(f'ds_write_b64 {oa[q]}, {vr(OB[u] + 2*q, 2)} offset:{5120*u}') for q in range(3)]
        return o

    order = [1, 2, 3, 4, 5, 6, 7, 0, 8]
    for n, i in enumerate(order):
        v = []
        if 2 <= n <= 8:
            v = fix(0, order[n-2]) + mxblk(order[n-2], n == 2)
        s.add(mix(v, qk(0, i)))
    s.add(fix(0, 0))
    s.add(combine()); s.add(mxblk(8, False)); s.add(negm())
    for u in range(2):
        s.add(sub(1)); s.add(sub(2))
        if u == 0:
            s.add(qk(1, 0))
        for i in range(1, 9):
            p = PB[i & 1]
            v = expcvt(i, p)
            mf = []
            if i + 2 <= 8:
                mf.append(sub(i + 2))
            if i > 1:
                mf += pv(u, i - 1, PB[(i - 1) & 1], i == 2)
                if u == 0:
                    mf += qk(1, i - 1)
            if u == 0 and i > 2:
                v = fix(1, i - 2) + mxblk(i - 2, i == 3) + v
            if u == 1 and i == 3:
                v = finish(0) + v
            s.add(mix(v, mf))
        p, q = PB[0], PB[1]
        if u == 0:
            s.add(qk(1, 8))
        s.add([I(f'v_bfi_b32 v{q+d}, v{PM+d}, 0, v{p+d}') for d in range(8)])
        v = [I(f'v_and_b32 v{p+d}, v{PM+d}, v{p+d}') for d in range(8)]
        s.add(mix(v, pv(u, 0, q, False)))
        v = []
        if u == 0:
            v = fix(1, 7) + mxblk(7, False) + fix(1, 0) + combine() + mxblk(8, False) + negm()
        s.add(mix(v, pv(u, 8, p, False)))
    s.add(finish(1))
    s.add(waitlg()); s('s_barrier')
    s(f'''v_add_u32 {t0}, {SCR}, {vL16}
s_lshl_b32 {sT0}, {sW}, 10
v_add_u32 {t0}, {sT0}, {t0}''')
    for q in range(3):
        s(f'ds_read_b128 {vr(32 + 4*q, 4)}, {t0} offset:{4096*q}')
    s(f'''v_lshl_add_u32 {t0}, {vLane}, 2, {sW}
v_cmp_lt_u32 vcc, 4, {t0}
v_cndmask_b32 {t1}, 0, 1, vcc
s_lshl_b32 {sT1}, {sJ}, 1
v_add_u32 {t1}, {sT1}, {t1}
v_lshlrev_b32 {t1}, 7, {t1}
s_lshl_b32 {sT2}, {sXcd}, 2
s_add_u32 {sT2}, {sT2}, {FLG + 2 * 8192}
v_add_u32 {t1}, {sT2}, {t1}
v_cmp_gt_u32 vcc, 10, {t0}
v_mov_b32 {t0}, {OOB}
v_cndmask_b32 {vT[2]}, {t0}, {t1}, vcc
s_mul_i32 {sT1}, {sT1}, 40
s_mul_i32 {sT2}, {sXcd}, 5
s_add_u32 {sT1}, {sT1}, {sT2}''')
    for q in range(3):
        s(f'''s_add_u32 {sT2}, {sW}, {4*q}
s_cmp_gt_u32 {sT2}, 4
s_cselect_b32 {sT3}, 35, 0
s_add_u32 {sT3}, {sT3}, {sT2}
s_add_u32 {sT3}, {sT3}, {sT1}
s_lshl_b32 {sT3}, {sT3}, 10
s_add_u32 {sT3}, {sT3}, {OA}
s_cmp_gt_u32 {sT2}, 9
s_cselect_b32 {sT3}, {OOB}, {sT3}''')
        last = s(f'buffer_store_dwordx4 {vr(32 + 4*q, 4)}, {vL16}, {SWS}, {sT3} offen sc1')
    s.add(publish(last, '0', vT[2]))
    s.add(stamp(6))
    s(f's_cmp_lt_u32 {sXcd}, 2\ns_cbranch_scc1 L_s3o')
    return s


def stage3(role, issued):
    s = Seg('s3' + role)
    raw = lambda k: ar(AA + 4 * k, 4)
    if role == 'o':
        s('L_s3o:')
        s.add(flag_poll(2, sTB1, 0, 8, 5))
    else:
        s.add(flag_poll(1, sTB1, 0, 10, 1))
    s.add(stamp(7))
    if role == 'w':
        s(f'''s_mul_i32 {sT1}, {sTB1}, 2560
s_add_u32 {sT1}, {sT1}, {ST2}
v_lshrrev_b32 v40, 5, {vLane}
v_mul_u32_u24 v40, {1280 - 256}, v40
v_lshl_add_u32 v40, {vLane}, 3, v40''')
        for i in range(5):
            s(f'buffer_load_dwordx2 {vr(42 + 2*i, 2)}, v40, {SWS}, {sT1} offen offset:{256*i} sc1')
    s(f's_mul_i32 {sT1}, {sTB1}, 40960\ns_add_u32 {sT1}, {sT1}, {OA if role == "o" else X1}')
    for k in range(40):
        if k and k % 4 == 0:
            s(f's_add_u32 {sT1}, {sT1}, 4096')
        s(f'buffer_load_dwordx4 {ar(AA + 4*k, 4)}, {vL16}, {SWS}, {sT1} offen' + (f' offset:{1024*(k%4)}' if k % 4 else '') + ' sc1')
    so = lambda b, u: f's{MSK + 2*b + u}'
    nks, base = (40, SA) if role == 'o' else (108, H3)
    s(f'''s_mul_i32 {sT0}, {sTB1}, {nks * 1024}
s_add_u32 {sT0}, {sT0}, {base}
s_lshl_b32 {sT1}, {sLa3}, 5
s_add_u32 {so(0,0)}, {sT0}, {sT1}
s_lshl_b32 {sT1}, {sLc3}, 5
s_add_u32 {so(4,0)}, {sT0}, {sT1}
s_add_u32 {so(4,1)}, {so(4,0)}, 1024''')
    for b in range(4):
        for u in range(2):
            if b or u:
                s(f's_add_u32 {so(b,u)}, {so(0,0)}, {2048*b + 1024*u}')
    if role == 'w':
        for q, (b, u) in enumerate([(4, 1), (0, 0), (3, 1), (4, 0)]):
            s(f's_cmp_eq_u32 {sCb4}, {q}\ns_cselect_b32 {so(b,u)}, {OOB}, {so(b,u)}')
        for i in range(1, 5):
            s(f'v_add_f32 v42, v42, v{42+2*i}\nv_add_f32 v43, v43, v{43+2*i}')
        s.add(half_sum('v42', 'v44')); s.add(half_sum('v43', 'v45'))
        s.add(ln_finish('v42', 'v43', 'v44', 'v45'))
        s(f'v_mov_b32 {vK1}, {f2u(C1)}\nv_mov_b32 {vK2}, {f2u(C2)}\nv_mov_b32 {vIC}, 1.0')
    stores = [[(so(b, u), 0, vL16) for u in range(2)] for b in range(5)]
    if role == 'w':
        issued, last = big_gemm(s, 18, issued, False, raw, lambda k: vr(AV + 4 * k, 4), 'gelu', False, stores)
    else:
        issued, last = big_gemm(s, 18, issued, False, None, raw, 'none', False, stores)
    s.add(stamp(8))
    s(f'''s_lshr_b32 {sT2}, {sXcd}, 1
s_add_u32 {sT2}, {sT2}, 3
s_and_b32 {sT2}, {sT2}, 3
s_lshl_b32 {sT2}, {sT2}, 2
s_add_u32 {sT2}, {sT2}, {sCb4}
s_lshl_b32 {sT2}, {sT2}, 2
s_lshl_b32 {sT0}, {sTB1}, 7
s_add_u32 {sT0}, {sT0}, {sT2}
s_add_u32 {sT0}, {sT0}, {FLG + 3 * 8192}''')
    s.add(publish(last, sT0))
    if role == 'w':
        s('s_branch L_s4')
    return s, issued


def stage4(issued):
    s = Seg('s4')
    s('L_s4:')
    s.add(flag_poll(3, sTB2, 0, 16, sNeed2))
    s.add(stamp(9))
    s(f'''s_mul_i32 {sKo}, {sTB2}, {108 * 1024}
s_add_u32 {sKo}, {sKo}, {H3}
s_mul_i32 {sVo}, {sTB2}, 40960
s_lshl_b32 {sT2}, {sCb2}, 12
s_add_u32 {sVo}, {sVo}, {sT2}
s_add_u32 {sVo}, {sVo}, {SA}
s_cmp_eq_u32 {sNeed2}, 0
s_cselect_b32 {sKo}, {OOB}, {sKo}
s_cselect_b32 {sVo}, {OOB}, {sVo}''')
    DEP = 32
    def aload(k):
        o = []
        if k and k % 4 == 0:
            o.append(I(f's_add_u32 {sKo}, {sKo}, 4096'))
        o.append(I(f'buffer_load_dwordx4 {ar(AA + 4*(k % 40), 4)}, {vL16}, {SWS}, {sKo} offen' + (f' offset:{1024*(k%4)}' if k % 4 else '') + ' sc1'))
        return o
    for k in range(DEP):
        s.add(aload(k))
    st = Stream(phase_steps(31, 108, 0, False, lambda k: ar(AA + 4 * (k % 40), 4), ACC[0:2]), issued)
    s.add(st.head())
    body = []
    for k in range(108):
        b = st.step(k)
        if k + DEP < 108:
            b += aload(k + DEP)
        if k == 60:
            b += [I(f'buffer_load_dwordx4 {vr(96 + 4*q, 4)}, {vL16}, {SWS}, {sVo} offen' + (f' offset:{1024*q}' if q else '') + ' sc1') for q in range(4)]
        body.append(b)
    fill = tile_lds_addr('v116', 'v117')
    for d in range(16):
        fill += [I(f'v_accvgpr_read_b32 v{121+2*d}, a{PX1+d}'), I(f'v_accvgpr_read_b32 v{185+2*d}, a{PX+d}'),
                 I(f'v_lshlrev_b32 v{120+2*d}, 16, v{121+2*d}'), I(f'v_and_b32 v{121+2*d}, 0xffff0000, v{121+2*d}'),
                 I(f'v_lshlrev_b32 v{184+2*d}, 16, v{185+2*d}'), I(f'v_and_b32 v{185+2*d}, 0xffff0000, v{185+2*d}')]
    for d in range(16):
        fill += [I(f'v_lshlrev_b32 v{152+2*d}, 16, v{96+d}'), I(f'v_and_b32 v{153+2*d}, 0xffff0000, v{96+d}')]
    fill += [I(f'v_lshrrev_b32 v112, 3, {vLane}'), I(f's_lshl_b32 {sT0}, {sTB2}, 5'), I(f'v_add_u32 v112, {sT0}, v112'),
             I(f'v_mul_u32_u24 v112, 1280, v112'), I(f'v_and_b32 v113, 7, {vLane}'), I(f'v_lshl_add_u32 v112, v113, 4, v112')]
    for i in range(1, 4):
        fill.append(I(f'v_add_u32 v{112+i}, {8*1280}, v{111+i}'))
    s.add(weave(body, fill, 150, 214))
    s.add(stamp(10))
    t = vT[:4]
    for g in range(8):
        a = [f'v{ACC[0] + 4*g + i}' for i in range(4)]
        for i in range(4): s(f'v_add_f32 {a[i]}, {a[i]}, v{120+4*g+i}')
        for i in range(4): s(f'v_mul_f32 {t[i]}, {f2u(-LOG2E)}, {a[i]}')
        for i in range(4): s(f'v_exp_f32 {t[i]}, {t[i]}')
        for i in range(4): s(f'v_add_f32 {t[i]}, 1.0, {t[i]}')
        for i in range(4): s(f'v_rcp_f32 {t[i]}, {t[i]}')
        for i in range(4): s(f'v_mul_f32 {a[i]}, {a[i]}, v{152+4*g+i}')
        for i in range(4): s(f'v_fma_f32 {a[i]}, {a[i]}, {t[i]}, v{184+4*g+i}')
        s(f'v_cvt_pk_bf16_f32 {a[0]}, {a[0]}, {a[1]}\nv_cvt_pk_bf16_f32 {a[1]}, {a[2]}, {a[3]}\nv_xor_b32 v117, {16*g}, v116')
        s(f'ds_write_b64 v117, {vr(ACC[0] + 4*g, 2)}')
    s(f'''v_lshrrev_b32 v117, 4, {vLane}
v_xor_b32 v118, v117, {vLane}
v_and_b32 v118, 7, v118
v_xor_b32 v119, 4, v118
v_and_b32 v117, 0x38, {vLane}
v_or_b32 v118, v118, v117
v_or_b32 v119, v119, v117
s_add_u32 {sT0}, {sW4K}, {SCR}
v_lshl_add_u32 v118, v118, 4, {sT0}
v_lshl_add_u32 v119, v119, 4, {sT0}''')
    s.add(waitlg())
    for i in range(4):
        s(f'ds_read_b128 {vr(96 + 4*i, 4)}, v{118 + (i & 1)} offset:{1024*i}')
    for i in range(4):
        s(f'buffer_store_dwordx4 {vr(96 + 4*i, 4)}, v{112+i}, {SOUT}, {sL2} offen')
    if OPT['ts']:
        s('s_waitcnt vmcnt(0)')
    s.add(stamp(11))
    s('s_endpgm')
    return s


def build(stop=99, ts=False, **kw):
    OPT.update(stop=stop, ts=ts, **kw)
    SLOW.clear()
    pro, iss0 = prologue()
    s1 = {}
    for r in ('qk', 'h', 'v'):
        s1[r], iss1 = stage1(r, iss0)
    s2, iss2 = stage2(iss1)
    att = attention()
    s3 = {}
    for r in ('w', 'o'):
        s3[r], iss3 = stage3(r, iss2)
    s4 = stage4(iss3)
    def cut(seg, keep_label):
        seg.ins = [x for x in seg.ins[:1] if x.pseudo == 'label'] + [I('s_waitcnt vmcnt(0)'), I('s_endpgm')]
    if stop < 2: cut(s2, True)
    if stop < 3: cut(att, False)
    if stop < 4:
        cut(s3['w'], False); cut(s3['o'], True)
    if stop < 5: cut(s4, True)
    for r1, r3 in (('h', 'o'), ('qk', 'w'), ('v', 'w')):
        legalize([pro, s1[r1], s2, att, s3[r3], s4])
    lines = []
    for sg in (pro, s1['qk'], s1['h'], s1['v'], s2, att, s3['w'], s3['o'], s4):
        lines.append(f'; ---- {sg.name}')
        lines += emit(sg)
    if stop >= 3:
        lines += SLOW
    hdr = open('recurrent_scan__sliding_block__mixer_s_mlp__prompt.s.ref').read().split('; Override')[0]
    txt = (hdr + f'; @launch grid=(256,1,1) block=(256,1,1) lds={LDS_SIZE}\n'
           '.amdgcn_target "amdgcn-amd-amdhsa--gfx950"\n.text\n'
           f'.globl {KNAME}\n.p2align 8\n.type {KNAME},@function\n{KNAME}:\n' + '\n'.join(lines) + '\n'
           f'''.section .rodata,"a"
.p2align 6
.amdhsa_kernel {KNAME}
  .amdhsa_next_free_vgpr 512
  .amdhsa_next_free_sgpr 102
  .amdhsa_accum_offset 256
  .amdhsa_group_segment_fixed_size 0
  .amdhsa_kernarg_size 88
  .amdhsa_user_sgpr_count 2
  .amdhsa_user_sgpr_kernarg_segment_ptr 1
  .amdhsa_system_sgpr_workgroup_id_x 1
.end_amdhsa_kernel
''')
    return txt


if __name__ == '__main__':
    import argparse
    ap = argparse.ArgumentParser()
    ap.add_argument('-o', default='k.s')
    ap.add_argument('--stop', type=int, default=99)
    ap.add_argument('--ts', action='store_true')
    a = ap.parse_args()
    t = build(a.stop, a.ts)
    open(a.o, 'w').write(t)
    print(a.o, len(t), 'bytes', t.count('\n'), 'lines')
```
